```python
import torch

def _softmax(x, axis=-1):
    return torch.softmax(x, dim=axis)
def _gelu(x):
    return torch.nn.functional.gelu(x, approximate="tanh")
def _silu(x):
    return torch.nn.functional.silu(x)
def _sigmoid(x):
    return torch.sigmoid(x)
def _layernorm(x, axis=-1, eps=1e-5):
    m = x.mean(dim=axis, keepdim=True)
    v = x.var(dim=axis, keepdim=True, unbiased=False)
    return (x - m) / torch.sqrt(v + eps)
def _scatter_add(tgt, idx, src, axis=0):
    return tgt.clone().index_add_(axis, idx, src)
def _segment_sum(src, seg, n):
    out = torch.zeros((n,) + src.shape[1:], dtype=src.dtype)
    return out.index_add_(0, seg, src)
def _pad(x, pw):
    flat = tuple(v for pair in reversed(pw) for v in pair)
    return torch.nn.functional.pad(x, flat)

kernel_name = 'sequential_preLN__softmax_full_mha__dense_activation_squared_relu__prompt'

def setup_inputs():

    _w = (lambda a: (lambda t: t.to(torch.bfloat16) if t.is_floating_point() else t)(torch.as_tensor(a)))
    def _A_setup():
        B, S, D = 1, 2048, 448
        return {
            "x": _w((lambda *s: torch.randn(*s, dtype=torch.bfloat16) * 0.05)(B, S, D)),
            "wqkv": _w((lambda *s: torch.randn(*s, dtype=torch.bfloat16) * 0.05)(D, 3 * D)),
            "wo": _w((lambda *s: torch.randn(*s, dtype=torch.bfloat16) * 0.05)(D, D)),
        }
    _A_in = _A_setup()

    def _B_setup():
        B, S, D, F = 1, 2048, 448, 1792
        return {
            "x": _w((lambda *s: torch.randn(*s, dtype=torch.bfloat16) * 0.05)(B, S, D)),
            "w1": _w((lambda *s: torch.randn(*s, dtype=torch.bfloat16) * 0.05)(D, F)),
            "b1": _w((lambda *s: torch.randn(*s, dtype=torch.bfloat16) * 0.2)(F)),
            "w2": _w((lambda *s: torch.randn(*s, dtype=torch.bfloat16) * 0.05)(F, D)),
            "b2": _w((lambda *s: torch.randn(*s, dtype=torch.bfloat16) * 0.8)(D)),
        }
    _B_in = _B_setup()

    return {
        "A_x": _A_in["x"],
        "A_wqkv": _A_in["wqkv"],
        "A_wo": _A_in["wo"],
        "B_x": _B_in["x"],
        "B_w1": _B_in["w1"],
        "B_b1": _B_in["b1"],
        "B_w2": _B_in["w2"],
        "B_b2": _B_in["b2"],
    }

def reference(A_x, A_wqkv, A_wo, B_x, B_w1, B_b1, B_w2, B_b2):
    def _A_ref(x, wqkv, wo):
        B, S, D = x.shape
        H = 16; Dh = D // H
        qkv = (lambda x, *d: x.permute(*d))((x @ wqkv).reshape(B, S, 3, H, Dh), 2, 0, 3, 1, 4)
        q, k, v = qkv[0], qkv[1], qkv[2]
        scale = Dh ** -0.5
        scores = torch.einsum("bhqd,bhkd->bhqk", q, k) * scale
        p = _softmax(scores, axis=-1)
        o = torch.einsum("bhqk,bhkd->bhqd", p, v)
        return (lambda x, *d: x.permute(*d))(o, 0, 2, 1, 3).reshape(B, S, D) @ wo

    def _B_ref(x, w1, b1, w2, b2):
        h = torch.einsum("bsd,df->bsf", x, w1) + b1
        zero = torch.zeros_like(h)
        r = torch.where(h > zero, h, zero)
        h = r * r
        out = torch.einsum("bsf,fd->bsd", h, w2) + b2
        return out

    x = A_x
    h = x + _A_ref(_layernorm(x, axis=-1), A_wqkv, A_wo)
    h2 = h + _B_ref(_layernorm(h, axis=-1), B_w1, B_b1, B_w2, B_b2)
    return h2
```

```python
class A:
    def __init__(self):
        self.L = []
        self.uid = 0
    def __call__(self, s):
        for ln in s.split("\n"):
            ln = ln.strip()
            if ln:
                self.L.append(("" if ln.endswith(":") or ln.startswith(".") else "    ") + ln)
    def c(self, s):
        self.L.append("    ; " + s)
    def label(self, p="L"):
        self.uid += 1
        return f"{p}_{self.uid}"
    def text(self):
        return "\n".join(self.L) + "\n"

def vr(b, n=1):
    return f"v{b}" if n == 1 else f"v[{b}:{b+n-1}]"
def ar(b, n=1):
    return f"a{b}" if n == 1 else f"a[{b}:{b+n-1}]"
def sr(b, n=1):
    return f"s{b}" if n == 1 else f"s[{b}:{b+n-1}]"

def srd(a, d, ptr, size):
    a(f"s_mov_b32 s{d}, s{ptr}")
    a(f"s_mov_b32 s{d+1}, s{ptr+1}")
    a(f"s_mov_b32 s{d+2}, {size if isinstance(size,str) else hex(size)}")
    a(f"s_mov_b32 s{d+3}, 0x00020000")

def kernel_head(a, name):
    a(".text")
    a(f".globl {name}")
    a(".p2align 8")
    a(f".type {name},@function")
    a(f"{name}:")

def kernel_desc(name, vgpr, sgpr=102, accum=None):
    if accum is None:
        accum = (vgpr + 3) // 4 * 4
    return f""".section .rodata,"a"
.p2align 6
.amdhsa_kernel {name}
  .amdhsa_next_free_vgpr {vgpr}
  .amdhsa_next_free_sgpr {sgpr}
  .amdhsa_accum_offset {accum}
  .amdhsa_group_segment_fixed_size 0
  .amdhsa_kernarg_size 88
  .amdhsa_user_sgpr_count 2
  .amdhsa_user_sgpr_kernarg_segment_ptr 1
  .amdhsa_system_sgpr_workgroup_id_x 1
.end_amdhsa_kernel
"""

import os
STAMP = bool(os.environ.get('STAMP'))
STAMP_BASE = 0x1800000
def stamp(a, i):
    if STAMP:
        a(f"s_mem{'time' if os.environ.get('CYC') else 'realtime'} s[{80+2*i}:{81+2*i}]")
def stamp_flush(a, kidx, swave, sws, n=8):
    if not STAMP: return
    a("s_waitcnt lgkmcnt(0)")
    a(f"s_lshl_b32 s96, s2, 2")
    a(f"s_add_u32 s96, s96, s{swave}")
    a(f"s_lshl_b32 s96, s96, 5")
    a(f"s_add_u32 s96, s96, {hex(STAMP_BASE + kidx*0x10000)}")
    a("v_mov_b32 v0, 0")
    for i in range(8):
        a(f"v_mov_b32 v{4+i}, s{80+2*i}")
    a("s_mov_b64 exec, 1")
    a(f"buffer_store_dwordx4 v[4:7], v0, s[{sws}:{sws+3}], s96 offen")
    a(f"buffer_store_dwordx4 v[8:11], v0, s[{sws}:{sws+3}], s96 offen offset:16")
```

```python
from asmlib import *
import os
QF, KF, VF = 0x000000, 0x200000, 0x400000
OA = 0x600000
HB = 0x800000
ST = 0xA00000
GB = 0xC00000
WS_SIZE = 0x2000000
QSCALE = 0x3e8b97f6
INV448 = 0x3b124925
EPS = 0x3727c5ac

def k1(a):
    name = "qkv_kernel"
    kernel_head(a, name)
    sW, sR, sG, sT = 3, 22, 23, 24
    SX, SWQ, SWS = 8, 12, 16
    vL = 1
    vXE, vXO = 2, 3
    vWD = 4
    vXA = 7
    vWB, vWB2 = 11, 12
    vS0, vS1, vQ0, vQ1 = 13, 14, 15, 16
    vRS, vNM = 18, 20
    vT = 22
    vOQ, vOK, vPV = 30, 31, 17
    vW = 32
    vAcc = 56
    vX = 104
    XST = 49152
    a(f"""
    s_cmp_ge_u32 s2, 256
    s_cbranch_scc1 {name}_end
    """)
    stamp(a, 0)
    a(f"""
    s_load_dwordx4 s[4:7], s[0:1], 0
    s_load_dwordx2 s[20:21], s[0:1], 80
    v_lshrrev_b32 v{vT}, 6, v0
    v_and_b32 v{vL}, 63, v0
    v_readfirstlane_b32 s{sW}, v{vT}
    s_and_b32 s25, s2, 7
    s_lshr_b32 s26, s2, 3
    s_lshr_b32 s{sR}, s25, 1
    s_lshl_b32 s{sR}, s{sR}, 2
    s_and_b32 s27, s26, 3
    s_add_u32 s{sR}, s{sR}, s27
    s_and_b32 s{sG}, s25, 1
    s_lshl_b32 s{sG}, s{sG}, 3
    s_lshr_b32 s27, s26, 2
    s_add_u32 s{sG}, s{sG}, s27
    s_lshl_b32 s{sT}, s{sR}, 2
    s_add_u32 s{sT}, s{sT}, s{sW}
    """)
    a.c("X dma voffsets")
    a(f"""
    v_lshrrev_b32 v{vT}, 3, v{vL}
    v_and_b32 v{vT+1}, 7, v{vL}
    v_lshrrev_b32 v{vT+2}, 1, v{vT}
    v_xor_b32 v{vT+1}, v{vT+1}, v{vT+2}
    v_mul_u32_u24 v{vT+3}, 896, v{vT}
    v_lshl_add_u32 v{vXE}, v{vT+1}, 4, v{vT+3}
    v_xor_b32 v{vT+1}, 4, v{vT+1}
    v_lshl_add_u32 v{vXO}, v{vT+1}, 4, v{vT+3}
    v_add_u32 v{vXO}, {8*896}, v{vXO}
    s_waitcnt lgkmcnt(0)
    """)
    srd(a, SX, 4, 2048*896)
    srd(a, SWQ, 6, 448*2688)
    srd(a, SWS, 20, WS_SIZE)
    a(f"""
    s_mul_i32 s28, s{sT}, {32*896}
    s_add_u32 s29, s28, {16*896}
    s_mul_i32 s30, s{sW}, 28672
    s_add_u32 s30, s30, {XST}
    s_mov_b32 m0, s30
    """)
    for ln in range(7):
        for rg in range(4):
            so = 28 if rg < 2 else 29
            vo = vXE if rg % 2 == 0 else vXO
            a(f"buffer_load_dwordx4 v{vo}, s[{SX}:{SX+3}], s{so} offen lds")
            a(f"s_add_u32 m0, m0, 1024")
            if rg == 1: a(f"s_add_u32 s28, s28, 128")
            elif rg == 3: a(f"s_add_u32 s29, s29, 128")
            else: a("s_nop 0")
    stamp(a, 1)
    a.c("W dma voffsets")
    for i3 in range(3):
        a(f"""
        v_add_u32 v{vT}, {64*i3}, v{vL}
        v_mul_u32_u24 v{vT+1}, 171, v{vT}
        v_lshrrev_b32 v{vT+1}, 11, v{vT+1}
        v_mul_u32_u24 v{vT+2}, 12, v{vT+1}
        v_sub_u32 v{vT+2}, v{vT}, v{vT+2}
        v_mul_u32_u24 v{vT+1}, 2688, v{vT+1}
        v_lshl_add_u32 v{vWD+i3}, v{vT+2}, 4, v{vT+1}
        """)
    a(f"""
    s_mul_i32 s31, s{sG}, 168
    s_mul_i32 s32, s{sW}, {16*2688}
    s_add_u32 s31, s31, s32
    s_mul_i32 s33, s{sW}, 3072
    """)
    def wdma(c):
        a(f"s_add_u32 m0, s33, {c*4*3072}")
        a("s_nop 0")
        for i3 in range(3):
            a(f"buffer_load_dwordx4 v{vWD+i3}, s[{SWQ}:{SWQ+3}], s31 offen lds")
            if i3 < 2:
                a("s_add_u32 m0, m0, 1024")
                a("s_nop 0")
        a(f"s_add_u32 s31, s31, {64*2688}")
    for c in range(4): wdma(c)
    a.c("read addresses")
    a(f"""
    v_and_b32 v{vT}, 31, v{vL}
    v_lshrrev_b32 v{vT+1}, 5, v{vL}
    v_bfe_u32 v{vT+2}, v{vL}, 1, 3
    v_xor_b32 v{vT+2}, v{vT+2}, v{vT+1}
    v_lshlrev_b32 v{vT+3}, 7, v{vT}
    v_add_u32 v{vT+3}, s30, v{vT+3}
    """)
    for q in range(4):
        a(f"v_xor_b32 v{vT+4}, {2*q}, v{vT+2}")
        a(f"v_lshl_add_u32 v{vXA+q}, v{vT+4}, 4, v{vT+3}")
    a(f"""
    v_bfe_u32 v{vT+4}, v{vL}, 2, 2
    v_lshl_add_u32 v{vT+4}, v{vT+1}, 3, v{vT+4}
    v_mul_u32_u24 v{vWB}, 192, v{vT+4}
    v_bfe_u32 v{vT+4}, v{vL}, 4, 1
    v_lshl_add_u32 v{vWB}, v{vT+4}, 5, v{vWB}
    v_and_b32 v{vT+4}, 3, v{vL}
    v_lshl_add_u32 v{vWB}, v{vT+4}, 3, v{vWB}
    v_add_u32 v{vWB2}, 49152, v{vWB}
    """)
    a(f"""
    v_lshlrev_b32 v{vOQ}, 4, v{vL}
    v_and_b32 v{vT+4}, 0x33, v{vL}
    v_bfe_u32 v{vT+5}, v{vL}, 2, 1
    v_lshl_or_b32 v{vT+4}, v{vT+5}, 3, v{vT+4}
    v_bfe_u32 v{vT+5}, v{vL}, 3, 1
    v_lshl_or_b32 v{vT+4}, v{vT+5}, 2, v{vT+4}
    v_lshlrev_b32 v{vOK}, 4, v{vT+4}
    v_mov_b32 v{vPV}, 0x3f803f80
    v_cmp_eq_u32 vcc, 28, v{vT}
    v_mov_b32 v{vS0}, 0
    v_mov_b32 v{vS1}, 0
    v_cndmask_b32 v{vPV}, 0, v{vPV}, vcc
    v_mov_b32 v{vQ0}, 0
    v_mov_b32 v{vQ1}, 0
    v_mov_b32 v{vT+7}, 0x3f803f80
    """)
    vOne = vT + 7
    a.c("X arrival: read frags + stats")
    def stats(ln):
        for s in range(4*ln, 4*ln+4):
            for i in range(4):
                r = vX + 4*s + i
                a(f"v_dot2c_f32_bf16 v{vS0 if i%2==0 else vS1}, v{r}, v{vOne}")
                a(f"v_dot2c_f32_bf16 v{vQ0 if i%2==0 else vQ1}, v{r}, v{r}")
    for ln in range(7):
        a(f"s_waitcnt vmcnt({40-4*(ln+1)})")
        if ln == 0: stamp(a, 2)
        for q in range(4):
            s = 4*ln+q
            a(f"ds_read_b128 v[{vX+4*s}:{vX+4*s+3}], v{vXA+q} offset:{ln*4096}")
        if ln > 0:
            a("s_waitcnt lgkmcnt(4)")
            stats(ln-1)
    a("s_waitcnt vmcnt(9) lgkmcnt(0)")
    stamp(a, 3)
    a("s_barrier")
    for c in range(4, 7): wdma(c)
    def wread(s, buf):
        base = vWB if s < 16 else vWB2
        so = s*3072 if s < 16 else (s-16)*3072
        for j in range(3):
            r = vW + 12*buf + 4*j
            a(f"ds_read_b64_tr_b16 v[{r}:{r+1}], v{base} offset:{so+56*j}")
            a(f"ds_read_b64_tr_b16 v[{r+2}:{r+3}], v{base} offset:{so+56*j+768}")
    wread(0, 0)
    stats(6)
    a(f"""
    s_nop 2
    v_add_f32 v{vS0}, v{vS0}, v{vS1}
    v_add_f32 v{vQ0}, v{vQ0}, v{vQ1}
    v_mov_b32 v{vS1}, v{vS0}
    v_mov_b32 v{vQ1}, v{vQ0}
    s_nop 1
    v_permlane32_swap_b32 v{vS0}, v{vS1}
    v_permlane32_swap_b32 v{vQ0}, v{vQ1}
    s_nop 1
    v_add_f32 v{vS0}, v{vS0}, v{vS1}
    v_add_f32 v{vQ0}, v{vQ0}, v{vQ1}
    v_mul_f32 v{vS0}, {hex(INV448)}, v{vS0}
    v_mul_f32 v{vQ0}, {hex(INV448)}, v{vQ0}
    v_fma_f32 v{vQ0}, -v{vS0}, v{vS0}, v{vQ0}
    v_max_f32 v{vQ0}, 0, v{vQ0}
    v_add_f32 v{vQ0}, {hex(EPS)}, v{vQ0}
    v_rsq_f32 v{vRS}, v{vQ0}
    s_nop 0
    v_mul_f32 v{vNM}, v{vS0}, v{vRS}
    v_sub_f32 v{vNM}, 0, v{vNM}
    """)
    def norm(s):
        out = []
        for i in range(4):
            r = vX + 4*s + i
            t = vT + 2*(i % 2)
            out.append(f"v_lshlrev_b32 v{t}, 16, v{r}")
            out.append(f"v_and_b32 v{t+1}, 0xffff0000, v{r}")
            if os.environ.get('NOPK'):
                out.append(f"v_fma_f32 v{t}, v{t}, v{vRS}, v{vNM}")
                out.append(f"v_fma_f32 v{t+1}, v{t+1}, v{vRS}, v{vNM}")
            elif os.environ.get('NONORM'):
                out = out[:-2]
                continue
            else:
                out.append(f"v_pk_fma_f32 v[{t}:{t+1}], v[{t}:{t+1}], v[{vRS}:{vRS+1}], v[{vNM}:{vNM+1}] op_sel_hi:[1,0,0]")
            out.append(f"v_cvt_pk_bf16_f32 v{r}, v{t}, v{t+1}")
        return out
    for x in norm(0): a(x)
    stamp(a, 4)
    def mainloop(isV):
        for s in range(28):
            buf = s & 1
            if s + 1 < 28:
                if (s+1) % 4 == 0:
                    c = (s+1)//4
                    a(f"s_waitcnt vmcnt({21-3*(c+1)})")
                    a("s_barrier")
                wread(s+1, buf ^ 1)
                a("s_waitcnt lgkmcnt(6)")
                nv = norm(s+1)
            else:
                a("s_waitcnt lgkmcnt(0)")
                nv = []
            for j in range(3):
                wf = vr(vW + 12*buf + 4*j, 4)
                xf = vr(vX + 4*s, 4)
                acc = vr(vAcc + 16*j, 16)
                cin = acc if s > 0 else "0"
                if isV[j]: a(f"v_mfma_f32_32x32x16_bf16 {acc}, {xf}, {wf}, {cin}")
                else: a(f"v_mfma_f32_32x32x16_bf16 {acc}, {wf}, {xf}, {cin}")
                n = len(nv); lo, hi = (0, (n+2)//3, (2*n+2)//3, n)[j], (0, (n+2)//3, (2*n+2)//3, n)[j+1]
                for x in nv[lo:hi]: a(x)
        stamp(a, 5)
        a("s_nop 7")
        a("s_nop 3")
        for j in range(3):
            acc = vAcc + 16*j
            a(f"""
            s_mul_i32 s40, s{sG}, 3
            s_add_u32 s40, s40, {j}
            s_lshr_b32 s41, s40, 4
            s_and_b32 s42, s40, 15
            s_lshl_b32 s42, s42, 6
            s_add_u32 s42, s42, s{sT}
            s_lshl_b32 s42, s42, 11
            s_lshl_b32 s43, s41, 21
            s_add_u32 s42, s42, s43
            """)
            if not isV[j]:
                a(f"""
                s_cmp_eq_u32 s41, 0
                s_cselect_b32 s44, {hex(QSCALE)}, 1.0
                s_cselect_b32 s45, 0, 0x3f803f80
                s_cselect_b64 s[46:47], -1, 0
                """)
                for r in range(16): a(f"v_mul_f32 v{acc+r}, s44, v{acc+r}")
                for d in range(8): a(f"v_cvt_pk_bf16_f32 v{acc+d}, v{acc+2*d}, v{acc+2*d+1}")
                a(f"""
                v_cndmask_b32 v{vT}, v{vOK}, v{vOQ}, s[46:47]
                s_mov_b32 exec_lo, 0
                v_mov_b32 v{acc+6}, s45
                v_mov_b32 v{acc+7}, 0
                s_mov_b32 exec_lo, -1
                """)
                va = vT
            else:
                for d in range(8): a(f"v_cvt_pk_bf16_f32 v{acc+d}, v{acc+2*d}, v{acc+2*d+1}")
                a("s_mov_b32 exec_lo, 0xf0000000")
                a("s_mov_b32 exec_hi, 0xf0000000")
                for d in range(8): a(f"v_mov_b32 v{acc+d}, v{vPV}")
                a("s_mov_b64 exec, -1")
                va = vOQ
            a(f"buffer_store_dwordx4 v[{acc}:{acc+3}], v{va}, s[{SWS}:{SWS+3}], s42 offen")
            a(f"buffer_store_dwordx4 v[{acc+4}:{acc+7}], v{va}, s[{SWS}:{SWS+3}], s42 offen offset:1024")
        stamp(a, 6)
        if STAMP: a("s_waitcnt vmcnt(0)")
        stamp(a, 7)
        stamp_flush(a, 0, sW, SWS)
        a("s_endpgm")
    a(f"""
    s_cmp_lt_u32 s{sG}, 10
    s_cbranch_scc1 {name}_A
    s_cmp_eq_u32 s{sG}, 10
    s_cbranch_scc1 {name}_B
    """)
    mainloop([1,1,1])
    a(f"{name}_A:")
    mainloop([0,0,0])
    a(f"{name}_B:")
    mainloop([0,0,1])
    a(f"{name}_end:")
    a("s_endpgm")
    return name, kernel_desc(name, 216, 100), f"; @launch kernel={name} grid=(256,1,1) block=(256,1,1) lds=163840"
```

```python
import sys
from asmlib import *
import k1
HDR = open('sequential_preLN__softmax_full_mha__dense_activation_squared_relu__prompt.s.ref').read().split('; Override launch')[0]
def build(ks, fn):
    a = A()
    descs, launches = [], []
    for k in ks:
        n, d, l = k(a)
        descs.append(d); launches.append(l)
    s = HDR + "\n".join(launches) + "\n" + '.amdgcn_target "amdgcn-amd-amdhsa--gfx950"\n' + a.text() + "".join(descs)
    open(fn, 'w').write(s)
if __name__ == '__main__':
    ks = [k1.k1]
    import importlib
    for m in ('k2','k3','k4','k5'):
        try:
            mod = importlib.import_module(m)
            ks.append(getattr(mod, m))
        except ImportError:
            pass
    build(ks, sys.argv[1] if len(sys.argv) > 1 else 'out.s')
```
